```python
import torch

def _softmax(x, axis=-1):
    return torch.softmax(x, dim=axis)

def _gelu(x):
    return torch.nn.functional.gelu(x, approximate='tanh')

def _silu(x):
    return torch.nn.functional.silu(x)

def _sigmoid(x):
    return torch.sigmoid(x)

def _layernorm(x, axis=-1, eps=1e-05):
    m = x.mean(dim=axis, keepdim=True)
    v = x.var(dim=axis, keepdim=True, unbiased=False)
    return (x - m) / torch.sqrt(v + eps)

def _scatter_add(tgt, idx, src, axis=0):
    return tgt.clone().index_add_(axis, idx, src)

def _segment_sum(src, seg, n):
    out = torch.zeros((n,) + src.shape[1:], dtype=src.dtype)
    return out.index_add_(0, seg, src)

def _pad(x, pw):
    flat = tuple((v for pair in reversed(pw) for v in pair))
    return torch.nn.functional.pad(x, flat)
kernel_name = 'adaLN_cond__ssm_conv_h3__swiglu_ffn__prompt'

def setup_inputs():

    _w = lambda a: (lambda t: t.to(torch.bfloat16) if t.is_floating_point() else t)(torch.as_tensor(a))

    def _A_setup():
        B, S, D = (1, 2048, 448)
        ks = 4
        return {'q': _w((lambda *s: torch.randn(*s, dtype=torch.bfloat16) * 0.05)(B, S, D)), 'k': _w((lambda *s: torch.randn(*s, dtype=torch.bfloat16) * 1.6)(B, S, D)), 'v': _w((lambda *s: torch.randn(*s, dtype=torch.bfloat16) * 1.6)(B, S, D)), 'shift_k': _w((lambda *s: torch.randn(*s, dtype=torch.bfloat16) * 1.6)(D, ks) * 0.5), 'ssm_k': _w((lambda *s: torch.randn(*s, dtype=torch.bfloat16) * 1.6)(D, S) * (1.0 / S ** 0.5)), 'ssm_D': _w((lambda *s: torch.randn(*s, dtype=torch.bfloat16) * 1.6)(D))}
    _A_in = _A_setup()

    def _B_setup():
        B, S, D, F = (1, 2048, 448, 1792)
        return {'x': _w((lambda *s: torch.randn(*s, dtype=torch.bfloat16) * 0.05)(B, S, D)), 'w_gate': _w((lambda *s: torch.randn(*s, dtype=torch.bfloat16) * 0.1)(D, F)), 'w_up': _w((lambda *s: torch.randn(*s, dtype=torch.bfloat16) * 0.1)(D, F)), 'w_down': _w((lambda *s: torch.randn(*s, dtype=torch.bfloat16) * 0.1)(F, D))}
    _B_in = _B_setup()
    return {'A_q': _A_in['q'], 'A_k': _A_in['k'], 'A_v': _A_in['v'], 'A_shift_k': _A_in['shift_k'], 'A_ssm_k': _A_in['ssm_k'], 'A_ssm_D': _A_in['ssm_D'], 'B_x': _B_in['x'], 'B_w_gate': _B_in['w_gate'], 'B_w_up': _B_in['w_up'], 'B_w_down': _B_in['w_down'], 'c': _w((lambda *s: torch.randn(*s, dtype=torch.bfloat16) * 0.2)(1, 448) * 8.0), 'w_mod': _w((lambda *s: torch.randn(*s, dtype=torch.bfloat16) * 0.2)(448, 6 * 448) * 448 ** (-0.5) * 8.0)}

def reference(A_q, A_k, A_v, A_shift_k, A_ssm_k, A_ssm_D, B_x, B_w_gate, B_w_up, B_w_down, c, w_mod):

    def _A_ref(q, k, v, shift_k, ssm_k, ssm_D):
        B, S, D = q.shape
        ks = shift_k.shape[-1]
        k_pad = _pad(k, ((0, 0), (ks - 1, 0), (0, 0)))
        k_shift = torch.zeros_like(k)
        for t in range(ks):
            k_shift = k_shift + k_pad[:, t:t + S, :] * shift_k[:, ks - 1 - t][None, None, :]
        kv = k_shift * v
        L = 2 * S
        kv_pad = _pad(kv, ((0, 0), (0, S), (0, 0)))
        kf_pad = _pad(ssm_k, ((0, 0), (0, S)))
        kv_f = (lambda x, axes=(-2, -1): torch.fft.rfft2(x.float(), dim=axes))(kv_pad[:, None, :, :], axes=(1, 2))
        kf_f = (lambda x, axes=(-2, -1): torch.fft.rfft2(x.float(), dim=axes))(kf_pad[:, None, :], axes=(1, 2))
        kf_f = (lambda x, *d: x.permute(*d))(kf_f, 1, 2, 0)
        y_f = kv_f * kf_f[None, :, :, :]
        y = (lambda x, s, axes=(-2, -1): torch.fft.irfft2(x, s=s, dim=axes).to(torch.bfloat16))(y_f, (1, L), axes=(1, 2))[:, 0, :S, :]
        y = y + kv * ssm_D[None, None, :]
        return q * y

    def _B_ref(x, w_gate, w_up, w_down):
        g = _silu(x @ w_gate)
        u = x @ w_up
        return g * u @ w_down
    x = A_q
    mod = (_silu(c) @ w_mod).reshape(c.shape[0], 6, 1, -1)
    sa, ca, ga, sb, cb, gb = (mod[:, 0].clone(), mod[:, 1].clone(), mod[:, 2].clone(), mod[:, 3].clone(), mod[:, 4].clone(), mod[:, 5].clone())
    h = _layernorm(x, axis=-1) * (1 + ca) + sa
    x = x + ga * _A_ref(h, A_k, A_v, A_shift_k, A_ssm_k, A_ssm_D)
    h = _layernorm(x, axis=-1) * (1 + cb) + sb
    x = x + gb * _B_ref(h, B_w_gate, B_w_up, B_w_down)
    return x
```

```python
class Asm:
    def __init__(self):
        self.lines = []
    def __call__(self, s):
        for l in s.strip("\n").split("\n"):
            self.lines.append("    " + l.strip())
    def label(self, l):
        self.lines.append(l + ":")
    def raw(self, s):
        self.lines.append(s)
    def comment(self, s):
        self.lines.append("    ; " + s)
    def nop(self, n):
        while n > 0:
            k = min(n, 16)
            self.lines.append(f"    s_nop {k-1}")
            n -= k
    def text(self):
        return "\n".join(self.lines) + "\n"

def vr(b, n=1):
    return f"v{b}" if n == 1 else f"v[{b}:{b+n-1}]"
def ar(b, n=1):
    return f"a{b}" if n == 1 else f"a[{b}:{b+n-1}]"
def sr(b, n=1):
    return f"s{b}" if n == 1 else f"s[{b}:{b+n-1}]"

KA = dict(q=0, k=8, v=16, shift=24, ssmk=32, ssmd=40, bx=48, wg=56, wu=64, wd=72, c=80, wmod=88, out=96, dbg=104, ws=112)

S, D, F = 2048, 448, 1792
UR_OFF  = 0x0
Y2T_OFF = 0x200000
MOD_OFF = 0x400000
X1_OFF  = 0x500000
H2F_OFF = 0x700000
GF_OFF  = 0x900000
WF1_OFF = 0x1000000
WF2_OFF = 0x1400000
SD2 = S * D * 2
GF_SZ = S * F * 2
WF1_SZ = 2 * D * F * 2
WF2_SZ = D * F * 2

def srd_from_ptr(a, dst, ptr, size):
    a(f"s_mov_b32 s{dst}, s{ptr}")
    a(f"s_mov_b32 s{dst+1}, s{ptr+1}")
    a(f"s_mov_b32 s{dst+2}, {size}")
    a(f"s_mov_b32 s{dst+3}, 0x00020000")

def srd_ws(a, dst, wsptr, off, size):
    a(f"s_add_u32 s{dst}, s{wsptr}, {off}")
    a(f"s_addc_u32 s{dst+1}, s{wsptr+1}, 0")
    a(f"s_mov_b32 s{dst+2}, {size}")
    a(f"s_mov_b32 s{dst+3}, 0x00020000")

def kernel_begin(a, name):
    a.raw(f".globl {name}")
    a.raw(".p2align 8")
    a.raw(f".type {name},@function")
    a.label(name)

def kernel_desc(name, vgpr, sgpr, accum):
    return f""".p2align 6
.amdhsa_kernel {name}
  .amdhsa_next_free_vgpr {vgpr}
  .amdhsa_next_free_sgpr {sgpr}
  .amdhsa_accum_offset {accum}
  .amdhsa_group_segment_fixed_size 0
  .amdhsa_kernarg_size 120
  .amdhsa_user_sgpr_count 2
  .amdhsa_user_sgpr_kernarg_segment_ptr 1
  .amdhsa_system_sgpr_workgroup_id_x 1
.end_amdhsa_kernel
"""

class VmTrack:
    def __init__(self, a):
        self.a = a
        self.ops = []
    def issue(self, tag):
        self.ops.append(tag)
    def count_after(self, tag):
        i = len(self.ops) - 1 - self.ops[::-1].index(tag)
        return len(self.ops) - 1 - i
    def wait(self, tag, extra=""):
        n = min(63, self.count_after(tag))
        self.a(f"s_waitcnt vmcnt({n}) {extra}".rstrip())
```

```python
from asmlib import *

def rnd_pairs(a, pairs, tmps):
    for p, t in zip(pairs, tmps):
        a(f"v_cvt_pk_bf16_f32 v{t}, v{p}, v{p+1}")
    for p, t in zip(pairs, tmps):
        a(f"v_lshlrev_b32 v{p}, 16, v{t}")
        a(f"v_and_b32 v{p+1}, 0xffff0000, v{t}")

def gen_k1(a, name="k1_kernel"):
    kernel_begin(a, name)
    a("s_cmp_ge_u32 s2, 224")
    a(f"s_cbranch_scc1 {name}_end")
    a(f"s_load_dwordx4 s[4:7], s[0:1], {KA['k']}")
    a(f"s_load_dwordx2 s[8:9], s[0:1], {KA['shift']}")
    a(f"s_load_dwordx2 s[10:11], s[0:1], {KA['ws']}")
    a("s_mul_hi_u32 s3, s2, 0x24924925")
    a("s_mul_i32 s12, s3, 7")
    a("s_sub_u32 s12, s2, s12")
    a("s_lshl_b32 s12, s12, 7")
    a("s_lshl_b32 s13, s3, 6")
    a("v_and_b32 v1, 7, v0")
    a("v_lshlrev_b32 v1, 2, v1")
    a("v_lshrrev_b32 v2, 6, v0")
    a("v_lshl_add_u32 v1, v2, 5, v1")
    a("v_add_u32 v120, s12, v1")
    a("v_bfe_u32 v2, v0, 3, 3")
    a("v_lshl_add_u32 v121, v2, 3, s13")
    a("s_movk_i32 s14, 896")
    a("v_mul_lo_u32 v122, v121, s14")
    a("v_add_u32 v122, v122, v120")
    a("v_subrev_u32 v123, 2688, v122")
    a("v_lshlrev_b32 v124, 2, v120")
    a("v_lshlrev_b32 v125, 11, v120")
    a("v_lshlrev_b32 v2, 1, v121")
    a("v_sub_u32 v125, v125, v2")
    a("v_add_u32 v125, 4080, v125")
    a("v_add_u32 v126, 4096, v125")
    a("s_movk_i32 s15, 4480")
    a("s_waitcnt lgkmcnt(0)")
    srd_from_ptr(a, 16, 4, SD2)
    srd_from_ptr(a, 20, 6, SD2)
    srd_from_ptr(a, 24, 8, D*4*2)
    srd_ws(a, 28, 10, UR_OFF, SD2)
    KP, VP, WP, KF, VF, WF, SP, QP, TT, OO = 2, 13, 22, 26, 48, 64, 72, 88, 104, 112
    a(f"buffer_load_dwordx4 v[{WP}:{WP+3}], v124, s[24:27], 0 offen")
    for i in range(3):
        a(f"buffer_load_dword v{KP+i}, v123, s[16:19], 0 offen offset:{896*i}")
    for i in range(8):
        if i < 5:
            a(f"buffer_load_dword v{KP+3+i}, v122, s[16:19], 0 offen offset:{896*i}")
        else:
            a(f"buffer_load_dword v{KP+3+i}, v122, s[16:19], s15 offen offset:{896*(i-5)}")
    for i in range(8):
        if i < 5:
            a(f"buffer_load_dword v{VP+i}, v122, s[20:23], 0 offen offset:{896*i}")
        else:
            a(f"buffer_load_dword v{VP+i}, v122, s[20:23], s15 offen offset:{896*(i-5)}")
    a("s_waitcnt vmcnt(8)")
    a(f"v_lshlrev_b32 v{WF+0}, 16, v{WP+0}")
    a(f"v_lshlrev_b32 v{WF+1}, 16, v{WP+2}")
    a(f"v_and_b32 v{WF+2}, 0xffff0000, v{WP+0}")
    a(f"v_and_b32 v{WF+3}, 0xffff0000, v{WP+2}")
    a(f"v_lshlrev_b32 v{WF+4}, 16, v{WP+1}")
    a(f"v_lshlrev_b32 v{WF+5}, 16, v{WP+3}")
    a(f"v_and_b32 v{WF+6}, 0xffff0000, v{WP+1}")
    a(f"v_and_b32 v{WF+7}, 0xffff0000, v{WP+3}")
    for i in range(11):
        a(f"v_lshlrev_b32 v{KF+2*i}, 16, v{KP+i}")
        a(f"v_and_b32 v{KF+2*i+1}, 0xffff0000, v{KP+i}")
    Sp = [SP+2*r for r in range(8)]
    Qp = [QP+2*r for r in range(8)]
    Tt = [TT+r for r in range(8)]
    def P(b): return f"v[{b}:{b+1}]"
    for r in range(8):
        a(f"v_pk_mul_f32 {P(Sp[r])}, {P(KF+2*r)}, {P(WF+6)}")
    rnd_pairs(a, Sp, Tt)
    for t in range(1, 4):
        for r in range(8):
            a(f"v_pk_mul_f32 {P(Qp[r])}, {P(KF+2*(r+t))}, {P(WF+2*(3-t))}")
        rnd_pairs(a, Qp, Tt)
        for r in range(8):
            a(f"v_pk_add_f32 {P(Sp[r])}, {P(Sp[r])}, {P(Qp[r])}")
        rnd_pairs(a, Sp, Tt)
    a("s_waitcnt vmcnt(0)")
    for i in range(8):
        a(f"v_lshlrev_b32 v{VF+2*i}, 16, v{VP+i}")
        a(f"v_and_b32 v{VF+2*i+1}, 0xffff0000, v{VP+i}")
    for r in range(8):
        a(f"v_pk_mul_f32 {P(Sp[r])}, {P(Sp[r])}, {P(VF+2*r)}")
    for ch in range(2):
        for i in range(4):
            a(f"v_cvt_pk_bf16_f32 v{OO+4*ch+i}, v{Sp[7-2*i]+ch}, v{Sp[6-2*i]+ch}")
    a(f"buffer_store_dwordx4 v[{OO}:{OO+3}], v125, s[28:31], 0 offen")
    a(f"buffer_store_dwordx4 v[{OO+4}:{OO+7}], v126, s[28:31], 0 offen")
    a.label(f"{name}_end")
    a("s_endpgm")
    return kernel_desc(name, 128, 32, 128)
```

```python
from asmlib import *
from k1 import rnd_pairs

HSTR = 4160
CH_STR = 4*HSTR + 4608
UR_L = 4*HSTR
RED_L = 2*CH_STR
K2_LDS = RED_L + 16384
NCONV, NMOD, NREL = 224, 42, 147
LOG2E = 0x3fb8aa3b

def P(b): return f"v[{b}:{b+1}]"
def Q4(b): return f"v[{b}:{b+3}]"

def gen_conv(a, name):
    a(f"s_load_dwordx4 s[4:7], s[0:1], {KA['ssmk']}")
    a(f"s_load_dwordx2 s[8:9], s[0:1], {KA['ws']}")
    a("v_lshrrev_b32 v1, 6, v0")
    a("s_nop 0")
    a("v_readfirstlane_b32 s10, v1")
    a("s_lshr_b32 s11, s10, 1")
    a("s_and_b32 s12, s10, 1")
    a("s_lshl_b32 s13, s2, 1")
    a("s_add_u32 s13, s13, s11")
    a("s_lshl_b32 s14, s13, 12")
    a(f"s_mul_i32 s15, s11, {CH_STR}")
    a("v_and_b32 v1, 127, v0")
    a("v_lshlrev_b32 v2, 4, v1")
    a("v_add_u32 v3, s14, v2")
    a("v_add_u32 v4, s15, v2")
    a("s_waitcnt lgkmcnt(0)")
    srd_from_ptr(a, 16, 4, SD2)
    srd_ws(a, 20, 8, UR_OFF, SD2)
    srd_ws(a, 24, 8, Y2T_OFF, SD2)
    a("s_lshl_b32 s28, s2, 2")
    a("s_load_dword s29, s[6:7], s28")
    HA = [32, 44]
    for q in range(2):
        for k in range(3):
            a(f"buffer_load_dwordx4 {Q4(HA[q]+4*k)}, v3, s[16:19], 0 offen offset:{2048*q+4*k}")
    UA = [56, 60]
    for q in range(2):
        a(f"buffer_load_dwordx4 {Q4(UA[q])}, v3, s[20:23], 0 offen offset:{2048*q}")
    for i in range(4):
        a(f"v_mov_b32 v{64+i}, 0")
    a("v_cmp_gt_u32 vcc, 32, v1")
    a("s_and_saveexec_b64 s[30:31], vcc")
    a(f"ds_write_b128 v4, {Q4(64)} offset:{UR_L+4096}")
    a("s_mov_b64 exec, s[30:31]")
    a("v_and_b32 v5, 15, v0")
    a("v_bfe_u32 v6, v0, 4, 2")
    a("v_add_u32 v7, 1, v5")
    a("v_and_b32 v8, 3, v7")
    a(f"v_mul_u32_u24 v8, {HSTR}, v8")
    a("v_lshrrev_b32 v7, 2, v7")
    a("v_lshl_add_u32 v8, v7, 3, v8")
    a("v_lshl_add_u32 v8, v6, 4, v8")
    a("s_lshl_b32 s28, s12, 6")
    a("s_add_u32 s28, s28, s15")
    a("v_add_u32 v8, s28, v8")
    a("v_lshlrev_b32 v9, 5, v5")
    a("v_lshlrev_b32 v10, 4, v6")
    a("v_sub_u32 v10, v10, v9")
    a(f"s_add_u32 s28, s28, {UR_L+480}")
    a("v_add_u32 v10, s28, v10")
    a("v_lshlrev_b32 v11, 3, v6")
    a("v_add_u32 v11, v11, v9")
    a(f"s_add_u32 s28, s15, {UR_L+4088-512*7}")
    a("v_sub_u32 v12, s28, v11")
    a("v_add_u32 v13, s14, v11")
    a("v_and_b32 v14, 63, v0")
    a("v_lshlrev_b32 v14, 4, v14")
    a("s_lshl_b32 s28, s10, 12")
    a(f"s_add_u32 s28, s28, {RED_L}")
    a("v_add_u32 v15, s28, v14")
    a("s_xor_b32 s28, s10, 1")
    a("s_lshl_b32 s28, s28, 12")
    a(f"s_add_u32 s28, s28, {RED_L}")
    a("v_add_u32 v16, s28, v14")
    for q in range(2):
        A_, B_, C_ = HA[q], HA[q]+4, HA[q]+8
        a(f"s_waitcnt vmcnt({7-3*q-2 if q==0 else 2})")
        T1, T3 = 68+8*q, 72+8*q
        for i in range(4):
            a(f"v_alignbit_b32 v{T1+i}, v{B_+i}, v{A_+i}, 16")
        for i in range(4):
            a(f"v_alignbit_b32 v{T3+i}, v{C_+i}, v{B_+i}, 16")
        o = 32 + 2048*q
        a(f"ds_write_b128 v4, {Q4(A_)} offset:{o}")
        a(f"ds_write_b128 v4, {Q4(T1)} offset:{o+HSTR}")
        a(f"ds_write_b128 v4, {Q4(B_)} offset:{o+2*HSTR}")
        a(f"ds_write_b128 v4, {Q4(T3)} offset:{o+3*HSTR}")
        if q == 0:
            a("v_cmp_eq_u32 vcc, 0, v1")
            a("s_and_saveexec_b64 s[30:31], vcc")
            for i in range(3):
                a(f"v_mov_b32 v{84+i}, 0")
                a(f"v_mov_b32 v{88+i}, 0")
            a("v_mov_b32 v92, 0")
            a("v_mov_b32 v93, 0")
            a(f"v_lshlrev_b32 v87, 16, v{A_}")
            a(f"v_mov_b32 v91, v{A_}")
            a(f"v_lshlrev_b32 v94, 16, v{A_}")
            a(f"v_mov_b32 v95, v{T1}")
            for c in range(4):
                a(f"ds_write_b128 v4, {Q4(64)} offset:{c*HSTR}")
            a(f"ds_write_b128 v4, {Q4(64)} offset:16")
            a(f"ds_write_b128 v4, {Q4(84)} offset:{HSTR+16}")
            a(f"ds_write_b128 v4, {Q4(88)} offset:{2*HSTR+16}")
            a(f"ds_write_b128 v4, {Q4(92)} offset:{3*HSTR+16}")
            a("s_mov_b64 exec, s[30:31]")
    a("s_waitcnt vmcnt(0)")
    for q in range(2):
        a(f"ds_write_b128 v4, {Q4(UA[q])} offset:{UR_L+2048*q}")
    a("s_waitcnt lgkmcnt(0)")
    a("s_lshl_b32 s30, s29, 16")
    a("s_and_b32 s31, s29, 0xffff0000")
    a("s_cmp_eq_u32 s11, 0")
    a("s_cselect_b32 s30, s30, s31")
    a("s_mov_b32 s31, s30")
    a("s_barrier")
    FR = [32, 96]
    ACC = 160
    def reads(rho):
        st = FR[rho & 1]
        out = []
        for x in range(8):
            j = 4*x + rho
            out.append(f"ds_read_b64 {P(st+4*x)}, v8 offset:{128*j}")
            out.append(f"ds_read_b64 {P(st+4*x+2)}, v8 offset:{128*j+8}")
            out.append(f"ds_read_b128 {Q4(st+32+4*x)}, v10 offset:{128*(28-4*x+rho)}")
        return out
    started = set()
    def mfma(rho, jp, ii):
        st = FR[rho & 1]
        t = jp + ii
        c = Q4(ACC+4*t) if t in started else "0"
        started.add(t)
        return f"v_mfma_f32_16x16x32_bf16 {Q4(ACC+4*t)}, {Q4(st+4*jp)}, {Q4(st+32+4*ii)}, {c}"
    def step_pairs(sig):
        ps = []
        for ii in range(sig):
            if sig + ii <= 7: ps.append((sig, ii))
        for jp in range(sig):
            if jp + sig <= 7: ps.append((jp, sig))
        if 2*sig <= 7: ps.append((sig, sig))
        return ps
    for r in reads(0): a(r)
    for rho in range(4):
        nxt = reads(rho+1) if rho < 3 else []
        if rho > 0:
            a("s_waitcnt lgkmcnt(0)")
        for sig in range(8):
            if rho == 0 and sig <= 4:
                n = 24 - 3*(sig+1) if sig < 4 else 0
                a(f"s_waitcnt lgkmcnt({min(15, n)})")
            for (jp, ii) in step_pairs(sig):
                a(mfma(rho, jp, ii))
                if (rho > 0 or sig >= 4):
                    for _ in range(2 if rho == 0 else 1):
                        if nxt: a(nxt.pop(0))
        assert not nxt
    a.nop(8)
    a("s_cmp_eq_u32 s12, 1")
    a(f"s_cbranch_scc1 {name}_ep1")
    for p in range(2):
        if p == 1:
            a.label(f"{name}_ep1")
        own = [4*p+i for i in range(4)]
        oth = [4*(1-p)+i for i in range(4)]
        for i, t in enumerate(oth):
            a(f"ds_write_b128 v15, {Q4(ACC+4*t)} offset:{1024*i}")
        for i, t in enumerate(own):
            a(f"ds_read_b64 {P(32+2*i)}, v12 offset:{512*(7-t)}")
        a("s_waitcnt lgkmcnt(0)")
        a("s_barrier")
        for i, t in enumerate(own):
            a(f"ds_read_b128 {Q4(40+4*i)}, v16 offset:{1024*i}")
        for i in range(4):
            a(f"v_and_b32 v{56+4*i}, 0xffff0000, v{32+2*i+1}")
            a(f"v_lshlrev_b32 v{56+4*i+1}, 16, v{32+2*i+1}")
            a(f"v_and_b32 v{56+4*i+2}, 0xffff0000, v{32+2*i}")
            a(f"v_lshlrev_b32 v{56+4*i+3}, 16, v{32+2*i}")
        up = [56+2*i for i in range(8)]
        for u in up:
            a(f"v_pk_mul_f32 {P(u)}, {P(u)}, s[30:31]")
        rnd_pairs(a, up, [72+i for i in range(8)])
        a("s_waitcnt lgkmcnt(0)")
        yp = []
        for i, t in enumerate(own):
            for h in range(2):
                a(f"v_pk_add_f32 {P(ACC+4*t+2*h)}, {P(ACC+4*t+2*h)}, {P(40+4*i+2*h)}")
                yp.append(ACC+4*t+2*h)
        rnd_pairs(a, yp, [72+i for i in range(8)])
        for y, u in zip(yp, up):
            a(f"v_pk_add_f32 {P(y)}, {P(y)}, {P(u)}")
        for i, y in enumerate(yp):
            a(f"v_cvt_pk_bf16_f32 v{80+i}, v{y}, v{y+1}")
        for i, t in enumerate(own):
            a(f"buffer_store_dwordx2 {P(80+2*i)}, v13, s[24:27], 0 offen offset:{512*t}")
        a("s_endpgm")

def gen_mod(a, name):
    a(f"s_load_dwordx4 s[4:7], s[0:1], {KA['c']}")
    a(f"s_load_dwordx2 s[8:9], s[0:1], {KA['ws']}")
    a(f"s_sub_u32 s3, s2, {NCONV}")
    a("v_and_b32 v1, 7, v0")
    a("v_lshrrev_b32 v2, 3, v0")
    a("v_mul_u32_u24 v3, 5376, v2")
    a("v_lshl_add_u32 v3, v1, 4, v3")
    a("s_lshl_b32 s10, s3, 7")
    a("v_add_u32 v3, s10, v3")
    a("v_lshlrev_b32 v4, 1, v2")
    a("s_waitcnt lgkmcnt(0)")
    srd_from_ptr(a, 12, 4, D*2)
    srd_from_ptr(a, 16, 6, D*6*D*2)
    srd_ws(a, 20, 8, MOD_OFF, 6*D*2)
    CV, WV, AC = 8, 24, 80
    for it in range(14):
        a(f"buffer_load_ushort v{CV+it}, v4, s[12:15], 0 offen offset:{64*it}")
    a("s_mov_b32 s11, 0")
    for it in range(14):
        a(f"buffer_load_dwordx4 {Q4(WV+4*it)}, v3, s[16:19], s11 offen")
        if it < 13: a(f"s_add_u32 s11, s11, {32*5376}")
    a("s_waitcnt vmcnt(14)")
    a(f"s_mov_b32 s24, {LOG2E | 0x80000000}")
    for it in range(14):
        a(f"v_lshlrev_b32 v{CV+it}, 16, v{CV+it}")
    for it in range(14):
        a(f"v_mul_f32 v{96+it}, s24, v{CV+it}")
    for it in range(14):
        a(f"v_exp_f32 v{96+it}, v{96+it}")
    for it in range(14):
        a(f"v_add_f32 v{96+it}, 1.0, v{96+it}")
    for it in range(14):
        a(f"v_rcp_f32 v{96+it}, v{96+it}")
    for it in range(14):
        a(f"v_mul_f32 v{CV+it}, v{CV+it}, v{96+it}")
    for it in range(14):
        a(f"v_cvt_pk_bf16_f32 v{CV+it}, v{CV+it}, v{CV+it}")
    for it in range(14):
        a(f"v_lshlrev_b32 v{CV+it}, 16, v{CV+it}")
    for e in range(8):
        a(f"v_mov_b32 v{AC+e}, 0")
    for it in range(14):
        a(f"s_waitcnt vmcnt({13-it})")
        for e in range(4):
            a(f"v_lshlrev_b32 v{88+2*e}, 16, v{WV+4*it+e}")
            a(f"v_and_b32 v{88+2*e+1}, 0xffff0000, v{WV+4*it+e}")
        for e in range(8):
            a(f"v_fmac_f32 v{AC+e}, v{CV+it}, v{88+e}")
    a("v_lshlrev_b32 v5, 5, v0")
    a(f"ds_write_b128 v5, {Q4(AC)}")
    a(f"ds_write_b128 v5, {Q4(AC+4)} offset:16")
    a("s_waitcnt lgkmcnt(0)")
    a("s_barrier")
    a("v_cmp_gt_u32 vcc, 64, v0")
    a("s_and_saveexec_b64 s[26:27], vcc")
    a(f"s_cbranch_execz {name}_modend")
    a("v_lshlrev_b32 v5, 2, v0")
    for r in range(32):
        a(f"ds_read_b32 v{24+r}, v5 offset:{256*r}")
    for r in range(0, 32, 2):
        if r == 0: a("s_waitcnt lgkmcnt(0)")
        a(f"v_add_f32 v{24+r}, v{24+r}, v{24+r+1}")
    for st in (2, 4, 8, 16):
        for r in range(0, 32, 2*st):
            a(f"v_add_f32 v{24+r}, v{24+r}, v{24+r+st}")
    a("v_cvt_pk_bf16_f32 v24, v24, v24")
    a("v_lshlrev_b32 v25, 16, v24")
    a("v_add_f32 v25, 1.0, v25")
    a("v_cvt_pk_bf16_f32 v25, v25, v25")
    a("s_mul_hi_u32 s11, s3, 0x24924925")
    a("s_cmp_eq_u32 s11, 1")
    a("s_cselect_b32 s25, 1, 0")
    a("s_cmp_eq_u32 s11, 4")
    a("s_cselect_b32 s25, 1, s25")
    a("s_cmp_eq_u32 s25, 1")
    a(f"s_cbranch_scc0 {name}_modst")
    a("v_mov_b32 v24, v25")
    a.label(f"{name}_modst")
    a("v_lshlrev_b32 v5, 1, v0")
    a("v_add_u32 v5, s10, v5")
    a("buffer_store_short v24, v5, s[20:23], 0 offen")
    a.label(f"{name}_modend")
    a("s_endpgm")

def gen_rel(a, name, first):
    a(f"s_load_dwordx4 s[4:7], s[0:1], {KA['wg']}")
    a(f"s_load_dwordx2 s[8:9], s[0:1], {KA['wd']}")
    a(f"s_load_dwordx2 s[10:11], s[0:1], {KA['ws']}")
    a(f"s_sub_u32 s3, s2, {first}")
    a(f"s_mul_hi_u32 s12, s3, {(1<<32)//49+1}")
    a("s_mul_i32 s13, s12, 49")
    a("s_sub_u32 s13, s3, s13")
    a("s_lshl_b32 s13, s13, 8")
    a("v_add_u32 v1, s13, v0")
    a("s_mov_b32 s28, 0x05040100")
    a("s_mov_b32 s29, 0x07060302")
    a("s_movk_i32 s30, 7168")
    a("s_movk_i32 s31, 14336")
    a("s_movk_i32 s32, 21504")
    a("s_cmp_eq_u32 s12, 2")
    a(f"s_cbranch_scc1 {name}_reld")
    R = 8
    def tail():
        for e in range(8):
            for i in range(4):
                sel = "s28" if e % 2 == 0 else "s29"
                a(f"v_perm_b32 v{R+32+4*e+i}, v{R+4*(2*i+1)+(e>>1)}, v{R+4*(2*i)+(e>>1)}, {sel}")
            a(f"buffer_store_dwordx4 {Q4(R+32+4*e)}, v5, s[20:23], 0 offen offset:{16*e}")
        a("s_endpgm")
    a("v_lshrrev_b32 v2, 5, v1")
    a("v_mul_u32_u24 v2, 9363, v2")
    a("v_lshrrev_b32 v2, 16, v2")
    a("v_mul_u32_u24 v3, 224, v2")
    a("v_sub_u32 v3, v1, v3")
    a("v_mul_u32_u24 v4, 28672, v2")
    a("v_lshl_add_u32 v4, v3, 4, v4")
    a("v_lshrrev_b32 v5, 2, v3")
    a("v_mul_u32_u24 v5, 57344, v5")
    a("v_lshrrev_b32 v6, 1, v2")
    a("v_lshl_add_u32 v5, v6, 11, v5")
    a("v_and_b32 v6, 1, v2")
    a("v_lshl_add_u32 v5, v6, 9, v5")
    a("v_and_b32 v6, 3, v3")
    a("v_lshl_add_u32 v5, v6, 7, v5")
    a("s_lshl_b32 s14, s12, 10")
    a("v_add_u32 v5, s14, v5")
    a("s_waitcnt lgkmcnt(0)")
    a("s_cmp_eq_u32 s12, 0")
    a("s_cselect_b32 s16, s4, s6")
    a("s_cselect_b32 s17, s5, s7")
    a(f"s_mov_b32 s18, {D*F*2}")
    a("s_mov_b32 s19, 0x00020000")
    srd_ws(a, 20, 10, WF1_OFF, WF1_SZ)
    so = ["0", "s30", "s31", "s32"]
    for j in range(8):
        a(f"buffer_load_dwordx4 {Q4(R+4*j)}, v4, s[16:19], {so[j>>1]} offen offset:{3584*(j&1)}")
    a("s_waitcnt vmcnt(0)")
    tail()
    a.label(f"{name}_reld")
    a("v_lshrrev_b32 v2, 3, v1")
    a("v_mul_u32_u24 v2, 9363, v2")
    a("v_lshrrev_b32 v2, 16, v2")
    a("v_mul_u32_u24 v3, 56, v2")
    a("v_sub_u32 v3, v1, v3")
    a("v_lshrrev_b32 v6, 1, v2")
    a("v_and_b32 v7, 1, v2")
    a("v_lshlrev_b32 v4, 4, v6")
    a("v_lshl_add_u32 v4, v7, 2, v4")
    a("v_mul_u32_u24 v4, 896, v4")
    a("v_lshl_add_u32 v4, v3, 4, v4")
    a("v_lshrrev_b32 v5, 3, v3")
    a("v_mul_u32_u24 v5, 229376, v5")
    a("v_lshl_add_u32 v5, v6, 11, v5")
    a("v_bfe_u32 v6, v3, 2, 1")
    a("v_lshl_add_u32 v5, v6, 10, v5")
    a("v_lshl_add_u32 v5, v7, 9, v5")
    a("v_and_b32 v6, 3, v3")
    a("v_lshl_add_u32 v5, v6, 7, v5")
    a("s_waitcnt lgkmcnt(0)")
    srd_from_ptr(a, 16, 8, D*F*2)
    srd_ws(a, 20, 10, WF2_OFF, WF2_SZ)
    for j in range(8):
        a(f"buffer_load_dwordx4 {Q4(R+4*j)}, v4, s[16:19], {'s30' if j>=4 else '0'} offen offset:{896*(j&3)}")
    a("s_waitcnt vmcnt(0)")
    tail()

def gen_k2(a, name="k2_kernel"):
    kernel_begin(a, name)
    a(f"s_cmp_ge_u32 s2, {NCONV+NMOD+NREL}")
    a(f"s_cbranch_scc1 {name}_end")
    a(f"s_cmp_ge_u32 s2, {NCONV+NMOD}")
    a(f"s_cbranch_scc1 {name}_rel")
    a(f"s_cmp_ge_u32 s2, {NCONV}")
    a(f"s_cbranch_scc1 {name}_mod")
    gen_conv(a, name)
    a.label(f"{name}_mod")
    gen_mod(a, name)
    a.label(f"{name}_rel")
    gen_rel(a, name, NCONV+NMOD)
    a.label(f"{name}_end")
    a("s_endpgm")
    return kernel_desc(name, 192, 40, 192)
```

```python
from asmlib import *
from k1 import rnd_pairs
import struct
def f32(x): return "0x%08x" % struct.unpack("<I", struct.pack("<f", x))[0]
def P(b): return f"v[{b}:{b+1}]"
def Q4(b): return f"v[{b}:{b+3}]"

def unpack4(a, dst, src):
    for i in range(4):
        a(f"v_lshlrev_b32 v{dst+2*i}, 16, v{src+i}")
        a(f"v_and_b32 v{dst+2*i+1}, 0xffff0000, v{src+i}")

def wave_reduce2(a, r1, r2, s1, s2):
    steps = ["quad_perm:[1,0,3,2] row_mask:0xf bank_mask:0xf",
             "quad_perm:[2,3,0,1] row_mask:0xf bank_mask:0xf",
             "row_half_mirror row_mask:0xf bank_mask:0xf",
             "row_mirror row_mask:0xf bank_mask:0xf",
             "row_bcast:15 row_mask:0xa bank_mask:0xf",
             "row_bcast:31 row_mask:0xc bank_mask:0xf"]
    a("s_nop 1")
    for st in steps:
        a(f"v_add_f32 v{r1}, v{r1}, v{r1} {st}")
        a(f"v_add_f32 v{r2}, v{r2}, v{r2} {st}")
        a("s_nop 0")
    a(f"v_readlane_b32 s{s1}, v{r1}, 63")
    a(f"v_readlane_b32 s{s2}, v{r2}, 63")

def layernorm(a, X, O, W, T, SC, mask, sx):
    xp = [X+2*i for i in range(4)]
    wp = [W+2*i for i in range(4)]
    op = [O+2*i for i in range(4)]
    a("s_nop 0")
    a(f"v_readlane_b32 s{sx}, v{X}, 0")
    a("s_nop 0")
    a(f"s_mov_b32 s{sx+1}, s{sx}")
    a("s_nop 1")
    for i in range(4):
        a(f"v_pk_add_f32 {P(wp[i])}, {P(xp[i])}, s[{sx}:{sx+1}] neg_lo:[0,1] neg_hi:[0,1]")
    a(f"v_pk_mul_f32 {P(T+2)}, {P(wp[0])}, {P(wp[0])}")
    a(f"v_pk_add_f32 {P(T)}, {P(wp[0])}, {P(wp[1])}")
    a(f"v_pk_fma_f32 {P(T+2)}, {P(wp[1])}, {P(wp[1])}, {P(T+2)}")
    a(f"v_pk_add_f32 {P(T)}, {P(T)}, {P(wp[2])}")
    a(f"v_pk_fma_f32 {P(T+2)}, {P(wp[2])}, {P(wp[2])}, {P(T+2)}")
    a(f"v_pk_add_f32 {P(T)}, {P(T)}, {P(wp[3])}")
    a(f"v_pk_fma_f32 {P(T+2)}, {P(wp[3])}, {P(wp[3])}, {P(T+2)}")
    a(f"v_add_f32 v{T}, v{T}, v{T+1}")
    a(f"v_add_f32 v{T+2}, v{T+2}, v{T+3}")
    a(f"v_cndmask_b32 v{T}, 0, v{T}, s[{mask}:{mask+1}]")
    a(f"v_cndmask_b32 v{T+2}, 0, v{T+2}, s[{mask}:{mask+1}]")
    wave_reduce2(a, T, T+2, sx+2, sx+3)
    a("s_nop 1")
    a(f"v_mov_b32 v{SC+1}, {f32(1.0/448)}")
    a(f"v_mul_f32 v{SC}, s{sx+2}, v{SC+1}")
    a(f"v_mul_f32 v{SC+2}, s{sx+3}, v{SC+1}")
    a(f"v_fma_f32 v{SC+2}, -v{SC}, v{SC}, v{SC+2}")
    a(f"v_add_f32 v{SC}, s{sx}, v{SC}")
    a(f"v_max_f32 v{SC+2}, 0, v{SC+2}")
    a(f"v_cvt_pk_bf16_f32 v{SC+1}, v{SC}, v{SC+2}")
    a(f"v_lshlrev_b32 v{SC}, 16, v{SC+1}")
    a(f"v_and_b32 v{SC+2}, 0xffff0000, v{SC+1}")
    a(f"v_add_f32 v{SC+2}, {f32(1e-5)}, v{SC+2}")
    a(f"v_cvt_pk_bf16_f32 v{SC+2}, v{SC+2}, v{SC+2}")
    a(f"v_lshlrev_b32 v{SC+2}, 16, v{SC+2}")
    a(f"v_sqrt_f32 v{SC+2}, v{SC+2}")
    for i in range(4):
        a(f"v_pk_add_f32 {P(op[i])}, {P(xp[i])}, {P(SC)} op_sel_hi:[1,0] neg_lo:[0,1] neg_hi:[0,1]")
    a(f"v_cvt_pk_bf16_f32 v{SC+2}, v{SC+2}, v{SC+2}")
    a(f"v_lshlrev_b32 v{SC+2}, 16, v{SC+2}")
    a(f"v_rcp_f32 v{SC+2}, v{SC+2}")
    rnd_pairs(a, op, [T+i for i in range(4)])
    for i in range(4):
        a(f"v_pk_mul_f32 {P(op[i])}, {P(op[i])}, {P(SC+2)} op_sel_hi:[1,0]")
    rnd_pairs(a, op, [T+i for i in range(4)])

def p3_row(a, XP, YP, SA, CA, GA, SB, CB, regs, mask, sx, before_y=None):
    XF, OF, WF, UF, T, SC, X1P, H2P = regs
    tl = [T+i for i in range(4)]
    op = [OF+2*i for i in range(4)]
    up = [UF+2*i for i in range(4)]
    xp = [XF+2*i for i in range(4)]
    unpack4(a, XF, XP)
    layernorm(a, XF, OF, WF, T, SC, mask, sx)
    unpack4(a, UF, CA)
    for i in range(4): a(f"v_pk_mul_f32 {P(op[i])}, {P(op[i])}, {P(up[i])}")
    unpack4(a, UF, SA)
    rnd_pairs(a, op, tl)
    for i in range(4): a(f"v_pk_add_f32 {P(op[i])}, {P(op[i])}, {P(up[i])}")
    rnd_pairs(a, op, tl)
    if before_y: before_y()
    unpack4(a, UF, YP)
    for i in range(4): a(f"v_pk_mul_f32 {P(op[i])}, {P(op[i])}, {P(up[i])}")
    unpack4(a, UF, GA)
    rnd_pairs(a, op, tl)
    for i in range(4): a(f"v_pk_mul_f32 {P(op[i])}, {P(op[i])}, {P(up[i])}")
    rnd_pairs(a, op, tl)
    for i in range(4): a(f"v_pk_add_f32 {P(xp[i])}, {P(xp[i])}, {P(op[i])}")
    rnd_pairs(a, xp, [X1P+i for i in range(4)])
    layernorm(a, XF, OF, WF, T, SC, mask, sx)
    unpack4(a, UF, CB)
    for i in range(4): a(f"v_pk_mul_f32 {P(op[i])}, {P(op[i])}, {P(up[i])}")
    unpack4(a, UF, SB)
    rnd_pairs(a, op, tl)
    for i in range(4): a(f"v_pk_add_f32 {P(op[i])}, {P(op[i])}, {P(up[i])}")
    for i in range(4): a(f"v_cvt_pk_bf16_f32 v{H2P+i}, v{op[i]}, v{op[i]+1}")

def gen_k3(a, name="k3_kernel"):
    kernel_begin(a, name)
    a("s_cmp_ge_u32 s2, 256")
    a(f"s_cbranch_scc1 {name}_end")
    a(f"s_load_dwordx2 s[4:5], s[0:1], {KA['q']}")
    a(f"s_load_dwordx2 s[6:7], s[0:1], {KA['ws']}")
    a("v_lshlrev_b32 v1, 12, v0")
    a("s_lshl_b32 s3, s2, 4")
    a("v_add_u32 v1, s3, v1")
    a("v_lshrrev_b32 v2, 6, v0")
    a("v_and_b32 v3, 63, v0")
    a("v_lshlrev_b32 v4, 4, v3")
    a("s_lshl_b32 s3, s2, 3")
    a("v_add_u32 v5, s3, v2")
    a("v_mul_u32_u24 v6, 896, v5")
    a("v_add_u32 v6, v6, v4")
    a("v_lshlrev_b32 v7, 1, v0")
    a("v_lshl_add_u32 v12, v2, 10, v4")
    a("v_lshrrev_b32 v13, 5, v5")
    a("v_mul_u32_u24 v13, 28672, v13")
    a("v_lshl_add_u32 v13, v3, 9, v13")
    a("v_and_b32 v14, 31, v5")
    a("v_lshl_add_u32 v13, v14, 4, v13")
    a("v_cmp_gt_u32 s[42:43], 56, v3")
    a("s_waitcnt lgkmcnt(0)")
    srd_from_ptr(a, 8, 4, SD2)
    srd_ws(a, 12, 6, Y2T_OFF, SD2)
    srd_ws(a, 16, 6, MOD_OFF, 6*D*2)
    srd_ws(a, 20, 6, X1_OFF, SD2)
    srd_ws(a, 24, 6, H2F_OFF, SD2)
    a(f"buffer_load_dwordx4 {Q4(44)}, v1, s[12:15], 0 offen")
    a(f"buffer_load_dwordx4 {Q4(8)}, v6, s[8:11], 0 offen")
    for i, sec in enumerate((1, 0, 2, 4, 3)):
        a(f"buffer_load_dwordx4 {Q4(24+4*i)}, v4, s[16:19], 0 offen offset:{896*sec}")
    CA, SA, GA, CB, SB = 24, 28, 32, 36, 40
    a("s_waitcnt vmcnt(6)")
    for i in range(4):
        a(f"ds_write_b16 v7, v{44+i} offset:{2048*i}")
        a(f"ds_write_b16_d16_hi v7, v{44+i} offset:{2048*i+1024}")
    a("s_waitcnt vmcnt(0)")
    def before_y():
        a("s_waitcnt lgkmcnt(0)")
        a("s_barrier")
        a(f"ds_read_b128 {Q4(44)}, v12")
        a("s_waitcnt lgkmcnt(0)")
    regs = (16, 48, 56, 64, 72, 76, 80, 84)
    p3_row(a, 8, 44, SA, CA, GA, SB, CB, regs, 42, 44, before_y)
    a("s_mov_b64 exec, s[42:43]")
    a(f"buffer_store_dwordx4 {Q4(80)}, v6, s[20:23], 0 offen")
    a(f"buffer_store_dwordx4 {Q4(84)}, v13, s[24:27], 0 offen")
    a.label(f"{name}_end")
    a("s_endpgm")
    return kernel_desc(name, 88, 48, 88)
```

```python
from asmlib import *
from k1 import rnd_pairs
from k3 import f32, unpack4
def P(b): return f"v[{b}:{b+1}]"
def Q4(b): return f"v[{b}:{b+3}]"
def A4(b): return f"a[{b}:{b+3}]"
def V16(b): return f"v[{b}:{b+15}]"
NLOG2E = "0xbfb8aa3b"

K4A_LDS = 112*1024

def silu_epilogue_ops(G, U, T, OUT, snl):
    ops = []
    A = ops.append
    TT = T + 16
    for i in range(8):
        A(f"v_cvt_pk_bf16_f32 v{TT+i}, v{G+2*i}, v{G+2*i+1}")
    for i in range(8):
        A(f"v_lshlrev_b32 v{G+2*i}, 16, v{TT+i}")
        A(f"v_and_b32 v{G+2*i+1}, 0xffff0000, v{TT+i}")
    for i in range(16):
        A(f"v_mul_f32 v{T+i}, s{snl}, v{G+i}")
    for i in range(16):
        A(f"v_exp_f32 v{T+i}, v{T+i}")
    for i in range(8):
        A(f"v_cvt_pk_bf16_f32 v{TT+i}, v{U+2*i}, v{U+2*i+1}")
    for i in range(16):
        A(f"v_add_f32 v{T+i}, 1.0, v{T+i}")
    for i in range(16):
        A(f"v_rcp_f32 v{T+i}, v{T+i}")
    for i in range(8):
        A(f"v_lshlrev_b32 v{U+2*i}, 16, v{TT+i}")
        A(f"v_and_b32 v{U+2*i+1}, 0xffff0000, v{TT+i}")
    for i in range(16):
        A(f"v_mul_f32 v{G+i}, v{G+i}, v{T+i}")
    for i in range(8):
        A(f"v_cvt_pk_bf16_f32 v{TT+i}, v{G+2*i}, v{G+2*i+1}")
    for i in range(8):
        A(f"v_lshlrev_b32 v{G+2*i}, 16, v{TT+i}")
        A(f"v_and_b32 v{G+2*i+1}, 0xffff0000, v{TT+i}")
    for i in range(16):
        A(f"v_mul_f32 v{G+i}, v{G+i}, v{U+i}")
    for i in range(8):
        A(f"v_cvt_pk_bf16_f32 v{OUT+i}, v{G+2*i}, v{G+2*i+1}")
    return ops

def gen_k4a(a, name="k4a_kernel"):
    kernel_begin(a, name)
    a("s_cmp_ge_u32 s2, 224")
    a(f"s_cbranch_scc1 {name}_end")
    a(f"s_load_dwordx2 s[4:5], s[0:1], {KA['ws']}")
    a("s_and_b32 s6, s2, 3")
    a("s_lshl_b32 s6, s6, 2")
    a("s_bfe_u32 s7, s2, 0x20003")
    a("s_add_u32 s6, s6, s7")
    a("s_bfe_u32 s7, s2, 0x10002")
    a("s_mul_i32 s7, s7, 7")
    a("s_lshr_b32 s8, s2, 5")
    a("s_add_u32 s7, s7, s8")
    a("v_lshrrev_b32 v1, 6, v0")
    a("s_nop 0")
    a("v_readfirstlane_b32 s9, v1")
    a("v_and_b32 v1, 63, v0")
    a("v_lshlrev_b32 v1, 4, v1")
    a("s_lshl_b32 s10, s7, 2")
    a("s_add_u32 s10, s10, s9")
    a("s_mul_i32 s11, s10, 57344")
    a("s_mul_i32 s12, s6, 114688")
    a("s_mul_i32 s13, s9, 7168")
    a("s_add_u32 s12, s12, s13")
    a("s_mul_i32 s14, s6, 458752")
    a("s_lshl_b32 s15, s10, 11")
    a("s_add_u32 s14, s14, s15")
    a(f"s_mov_b32 s33, {NLOG2E}")
    a("s_waitcnt lgkmcnt(0)")
    srd_ws(a, 16, 4, WF1_OFF, WF1_SZ)
    srd_ws(a, 20, 4, H2F_OFF, SD2)
    srd_ws(a, 24, 4, GF_OFF, GF_SZ)
    a("v_add_u32 v2, s14, v1")
    def dma(rt):
        a(f"s_add_u32 s28, s13, {rt*28672}")
        a("s_mov_b32 m0, s28")
        a(f"s_add_u32 s29, s12, {rt*28672}")
        for i in range(4):
            a(f"buffer_load_dwordx4 v1, s[20:23], s29 offen offset:{1024*i} lds")
        a(f"s_add_u32 s28, s28, 4096")
        a("s_mov_b32 m0, s28")
        a(f"s_add_u32 s29, s29, 4096")
        for i in range(3):
            a(f"buffer_load_dwordx4 v1, s[20:23], s29 offen offset:{1024*i} lds")
    vm = VmTrack(a)
    def dma_t(rt):
        dma(rt)
        for i in range(7): vm.issue(("x", rt, i))
    dma_t(0)
    a("s_mov_b32 s30, s11")
    for fr in range(56):
        if fr and fr % 4 == 0:
            a("s_add_u32 s30, s30, 4096")
        a(f"buffer_load_dwordx4 {A4(4*fr)}, v1, s[16:19], s30 offen offset:{1024*(fr%4)}")
        vm.issue(("w", fr))
    ACC = [16, 48]
    XR, NX = 80, 8
    T, OUT = 112, 136
    vm.wait(("x", 0, 6))
    a("s_barrier")
    seq = [(rt, ks) for rt in range(4) for ks in range(28)]
    def xread(idx):
        rt, ks = seq[idx]
        off = rt*28672 + ks*1024
        base = "v1" if off < 65536 else "v3"
        if off >= 65536: off -= 65536
        return f"ds_read_b128 {Q4(XR+4*(idx%NX))}, {base} offset:{off}"
    a("v_add_u32 v3, 0x10000, v1")
    PF = 4
    pend = []
    def emit_pend(n):
        for _ in range(n):
            if pend:
                op = pend.pop(0)
                a(op)
                if op.startswith("buffer_store"): vm.issue(("st",))
    for i in range(PF): a(xread(i))
    for idx, (rt, ks) in enumerate(seq):
        acc = ACC[rt & 1]
        lg = f"lgkmcnt({min(PF-1, len(seq)-1-idx)})"
        if rt == 0:
            vm.wait(("w", 2*ks+1), lg)
        else:
            a(f"s_waitcnt {lg}")
        x = Q4(XR+4*(idx % NX))
        cg = "0" if ks == 0 else V16(acc)
        cu = "0" if ks == 0 else V16(acc+16)
        a(f"v_mfma_f32_32x32x16_bf16 {V16(acc)}, {A4(8*ks)}, {x}, {cg}")
        if rt == 0 and ks in (4, 8, 12):
            dma_t(ks // 4)
        nidx = idx + PF
        if nidx < len(seq):
            if seq[nidx][1] == 0:
                vm.wait(("x", seq[nidx][0], 6))
                a("s_barrier")
            a(xread(nidx))
        nper = 4 if ks >= 3 else 0
        emit_pend(nper)
        a(f"v_mfma_f32_32x32x16_bf16 {V16(acc+16)}, {A4(8*ks+4)}, {x}, {cu}")
        emit_pend(nper)
        if ks == 27:
            assert not pend, len(pend)
            pend = silu_epilogue_ops(acc, acc+16, T, OUT, 33)
            pend.append(f"s_mov_b32 s31, {rt*114688}")
            pend.append(f"buffer_store_dwordx4 {Q4(OUT)}, v2, s[24:27], s31 offen")
            pend.append(f"buffer_store_dwordx4 {Q4(OUT+4)}, v2, s[24:27], s31 offen offset:1024")
    a.nop(12)
    emit_pend(len(pend))
    a.label(f"{name}_end")
    a("s_endpgm")
    return kernel_desc(name, 256+224, 40, 256)

K4B_PITCH = 272
K4B_LDS = 4*64*K4B_PITCH

def gen_k4b(a, name="k4b_kernel"):
    kernel_begin(a, name)
    a("s_cmp_ge_u32 s2, 224")
    a(f"s_cbranch_scc1 {name}_end")
    a(f"s_load_dwordx2 s[4:5], s[0:1], {KA['ws']}")
    a(f"s_load_dwordx2 s[34:35], s[0:1], {KA['out']}")
    a("s_and_b32 s6, s2, 7")
    a("s_lshl_b32 s6, s6, 2")
    a("s_bfe_u32 s7, s2, 0x20003")
    a("s_add_u32 s6, s6, s7")
    a("s_lshr_b32 s7, s2, 5")
    a("v_lshrrev_b32 v1, 6, v0")
    a("s_nop 0")
    a("v_readfirstlane_b32 s9, v1")
    a("v_and_b32 v1, 63, v0")
    a("v_lshlrev_b32 v1, 4, v1")
    a("s_lshl_b32 s10, s7, 2")
    a("s_add_u32 s10, s10, s9")
    a("s_mul_i32 s11, s10, 57344")
    a("s_mul_i32 s12, s6, 229376")
    a("s_mul_i32 s13, s9, 28672")
    a("s_add_u32 s12, s12, s13")
    a("s_add_u32 s13, s12, 114688")
    a("v_lshrrev_b32 v4, 2, v0")
    a("v_and_b32 v5, 3, v0")
    a("s_lshl_b32 s14, s6, 6")
    a("v_add_u32 v6, s14, v4")
    a("v_mul_u32_u24 v6, 896, v6")
    a("s_lshl_b32 s15, s7, 7")
    a("v_lshl_add_u32 v7, v5, 4, s15")
    a("v_add_u32 v6, v6, v7")
    a(f"v_mul_u32_u24 v8, {K4B_PITCH}, v4")
    a("v_lshl_add_u32 v8, v5, 5, v8")
    a("v_and_b32 v9, 31, v0")
    a(f"v_mul_u32_u24 v9, {K4B_PITCH}, v9")
    a("v_bfe_u32 v10, v0, 5, 1")
    a("v_lshl_add_u32 v9, v10, 4, v9")
    a(f"s_mul_i32 s14, s9, {64*K4B_PITCH}")
    a("v_add_u32 v9, s14, v9")
    a("s_waitcnt lgkmcnt(0)")
    srd_ws(a, 16, 4, WF2_OFF, WF2_SZ)
    srd_ws(a, 20, 4, GF_OFF, GF_SZ)
    srd_ws(a, 24, 4, X1_OFF, SD2)
    srd_ws(a, 28, 4, MOD_OFF, 6*D*2)
    srd_from_ptr(a, 36, 34, SD2)
    ACC = 16
    XR, NXS = 80, 16
    EX, EG = 208, 216
    a(f"buffer_load_dwordx4 {Q4(EX)}, v6, s[24:27], 0 offen")
    a(f"buffer_load_dwordx4 {Q4(EX+4)}, v6, s[24:27], 0 offen offset:64")
    a("s_movk_i32 s14, 4480")
    a(f"buffer_load_dwordx4 {Q4(EG)}, v7, s[28:31], s14 offen")
    a(f"buffer_load_dwordx4 {Q4(EG+4)}, v7, s[28:31], s14 offen offset:64")
    def loads(kk):
        if kk % 2 == 0:
            a(f"s_add_u32 s40, s11, {kk*2048}")
        if kk % 4 == 0:
            a(f"s_add_u32 s41, s12, {kk*1024}")
            a(f"s_add_u32 s42, s13, {kk*1024}")
        for ct in range(2):
            a(f"buffer_load_dwordx4 {A4(8*kk+4*ct)}, v1, s[16:19], s40 offen offset:{(kk%2)*2048+1024*ct}")
        for rr in range(2):
            a(f"buffer_load_dwordx4 {Q4(XR+8*(kk%NXS)+4*rr)}, v1, s[20:23], s{41+rr} offen offset:{(kk%4)*1024}")
    AHEAD = 14
    for kk in range(AHEAD): loads(kk)
    for kk in range(28):
        issued = min(28, kk + AHEAD)
        a(f"s_waitcnt vmcnt({4*(issued-kk-1)})")
        for rr in range(2):
            for ct in range(2):
                acc = ACC + 16*(2*rr+ct)
                c = "0" if kk == 0 else V16(acc)
                a(f"v_mfma_f32_32x32x16_bf16 {V16(acc)}, {A4(8*kk+4*ct)}, {Q4(XR+8*(kk%NXS)+4*rr)}, {c}")
        if kk + AHEAD < 28: loads(kk + AHEAD)
    a.nop(12)
    for rr in range(2):
        for ct in range(2):
            acc = ACC + 16*(2*rr+ct)
            for q in range(4):
                a(f"ds_write_b128 v9, {Q4(acc+4*q)} offset:{32*rr*K4B_PITCH + (32*ct+8*q)*4}")
    a("s_waitcnt lgkmcnt(0)")
    a("s_barrier")
    R = 80
    for w in range(4):
        for c in range(2):
            for h in range(2):
                a(f"ds_read_b128 {Q4(R+16*w+8*c+4*h)}, v8 offset:{w*64*K4B_PITCH + 128*c + 16*h}")
    UX, UG = 16, 32
    unpack4(a, UX, EX); unpack4(a, UX+8, EX+4)
    unpack4(a, UG, EG); unpack4(a, UG+8, EG+4)
    a("s_waitcnt lgkmcnt(0)")
    for i in range(8):
        a(f"v_pk_add_f32 {P(R+2*i)}, {P(R+2*i)}, {P(R+16+2*i)}")
        a(f"v_pk_add_f32 {P(R+32+2*i)}, {P(R+32+2*i)}, {P(R+48+2*i)}")
    for i in range(8):
        a(f"v_pk_add_f32 {P(R+2*i)}, {P(R+2*i)}, {P(R+32+2*i)}")
    pp = [R+2*i for i in range(8)]
    tt = [48+i for i in range(8)]
    rnd_pairs(a, pp, tt)
    for i in range(8):
        a(f"v_pk_mul_f32 {P(pp[i])}, {P(pp[i])}, {P(UG+2*i)}")
    rnd_pairs(a, pp, tt)
    for i in range(8):
        a(f"v_pk_add_f32 {P(pp[i])}, {P(pp[i])}, {P(UX+2*i)}")
    for i in range(8):
        a(f"v_cvt_pk_bf16_f32 v{56+i}, v{pp[i]}, v{pp[i]+1}")
    a(f"buffer_store_dwordx4 {Q4(56)}, v6, s[36:39], 0 offen")
    a(f"buffer_store_dwordx4 {Q4(60)}, v6, s[36:39], 0 offen offset:64")
    a.label(f"{name}_end")
    a("s_endpgm")
    return kernel_desc(name, 256+224, 48, 256)
```

```python
import sys
sys.path.insert(0, "gen")
from asmlib import *
from k1 import gen_k1
from k2 import gen_k2, K2_LDS, NCONV, NMOD, NREL
from k3 import gen_k3
from k4 import gen_k4a, gen_k4b, K4A_LDS, K4B_LDS

def main(out):
    a = Asm()
    hdr = open("adaLN_cond__ssm_conv_h3__swiglu_ffn__prompt.s.ref").read().split("; Override launch")[0]
    launches = [
        ("k1_kernel", 224, 256, 0),
        ("k2_kernel", NCONV+NMOD+NREL, 256, K2_LDS),
        ("k3_kernel", 256, 512, 8192),
        ("k4a_kernel", 224, 256, K4A_LDS),
        ("k4b_kernel", 224, 256, K4B_LDS),
    ]
    for n, g, b, l in launches:
        hdr += f"; @launch kernel={n} grid=({g},1,1) block=({b},1,1) lds={l}\n"
    a.raw('.amdgcn_target "amdgcn-amd-amdhsa--gfx950"')
    a.raw(".text")
    descs = [gen_k1(a), gen_k2(a), gen_k3(a), gen_k4a(a), gen_k4b(a)]
    txt = hdr + a.text() + '.section .rodata,"a"\n' + "".join(descs)
    open(out, "w").write(txt)

main(sys.argv[1] if len(sys.argv) > 1 else "adaLN_cond__ssm_conv_h3__swiglu_ffn__prompt.s")
```
